```python
import torch

def _softmax(x, axis=-1):
    return torch.softmax(x, dim=axis)
def _gelu(x):
    return torch.nn.functional.gelu(x, approximate="tanh")
def _silu(x):
    return torch.nn.functional.silu(x)
def _sigmoid(x):
    return torch.sigmoid(x)
def _layernorm(x, axis=-1, eps=1e-5):
    m = x.mean(dim=axis, keepdim=True)
    v = x.var(dim=axis, keepdim=True, unbiased=False)
    return (x - m) / torch.sqrt(v + eps)
def _scatter_add(tgt, idx, src, axis=0):
    return tgt.clone().index_add_(axis, idx, src)
def _segment_sum(src, seg, n):
    out = torch.zeros((n,) + src.shape[1:], dtype=src.dtype)
    return out.index_add_(0, seg, src)
def _pad(x, pw):
    flat = tuple(v for pair in reversed(pw) for v in pair)
    return torch.nn.functional.pad(x, flat)

kernel_name = 'concat_heads__gqa_block_cached__gqa_block_cached__near_ridge'

def setup_inputs():

    _w = (lambda a: (lambda t: t.to(torch.bfloat16) if t.is_floating_point() else t)(torch.as_tensor(a)))
    def _A_setup():
        B, Sq, D = 8, 112, 512
        Hq, Hkv, Sk, Dh = 32, 32, 512, 128
        assert Hq % Hkv == 0, (Hq, Hkv)
        return {
            "x": _w((lambda *s: torch.randn(*s, dtype=torch.bfloat16) * 0.8)(B, Sq, D)),
            "k_cache": _w((lambda *s: torch.randn(*s, dtype=torch.bfloat16) * 0.8)(B, Hkv, Sk, Dh)),
            "v_cache": _w((lambda *s: torch.randn(*s, dtype=torch.bfloat16) * 0.05)(B, Hkv, Sk, Dh)),
            "wq": _w((lambda *s: torch.randn(*s, dtype=torch.bfloat16) * 0.8)(D, Hq * Dh) * (D ** -0.5)),
            "wo": _w((lambda *s: torch.randn(*s, dtype=torch.bfloat16) * 0.05)(Hq * Dh, D) * ((Hq * Dh) ** -0.5)),
        }
    _A_in = _A_setup()

    def _B_setup():
        B, Sq, D = 8, 112, 512
        Hq, Hkv, Sk, Dh = 32, 32, 512, 128
        assert Hq % Hkv == 0, (Hq, Hkv)
        return {
            "x": _w((lambda *s: torch.randn(*s, dtype=torch.bfloat16) * 0.8)(B, Sq, D)),
            "k_cache": _w((lambda *s: torch.randn(*s, dtype=torch.bfloat16) * 0.8)(B, Hkv, Sk, Dh)),
            "v_cache": _w((lambda *s: torch.randn(*s, dtype=torch.bfloat16) * 0.05)(B, Hkv, Sk, Dh)),
            "wq": _w((lambda *s: torch.randn(*s, dtype=torch.bfloat16) * 0.8)(D, Hq * Dh) * (D ** -0.5)),
            "wo": _w((lambda *s: torch.randn(*s, dtype=torch.bfloat16) * 0.05)(Hq * Dh, D) * ((Hq * Dh) ** -0.5)),
        }
    _B_in = _B_setup()

    return {
        "A_x": _A_in["x"],
        "A_k_cache": _A_in["k_cache"],
        "A_v_cache": _A_in["v_cache"],
        "A_wq": _A_in["wq"],
        "A_wo": _A_in["wo"],
        "B_x": _B_in["x"],
        "B_k_cache": _B_in["k_cache"],
        "B_v_cache": _B_in["v_cache"],
        "B_wq": _B_in["wq"],
        "B_wo": _B_in["wo"],
    }

def reference(A_x, A_k_cache, A_v_cache, A_wq, A_wo, B_x, B_k_cache, B_v_cache, B_wq, B_wo):
    def _A_ref(x, k_cache, v_cache, wq, wo):
        B, Sq, D = x.shape
        Hq, Dh = 32, 128
        Hkv = k_cache.shape[1]
        rep = Hq // Hkv
        q = (lambda x, *d: x.permute(*d))((x @ wq).reshape(B, Sq, Hq, Dh), 0, 2, 1, 3)
        k = (lambda x, n, axis: torch.repeat_interleave(x, n, dim=axis))(k_cache, rep, axis=1)
        v = (lambda x, n, axis: torch.repeat_interleave(x, n, dim=axis))(v_cache, rep, axis=1)
        scores = torch.einsum("bhqd,bhkd->bhqk", q, k) * (Dh ** -0.5)
        p = _softmax(scores, axis=-1)
        o = torch.einsum("bhqk,bhkd->bhqd", p, v)
        return (lambda x, *d: x.permute(*d))(o, 0, 2, 1, 3).reshape(B, Sq, Hq * Dh) @ wo

    def _B_ref(x, k_cache, v_cache, wq, wo):
        B, Sq, D = x.shape
        Hq, Dh = 32, 128
        Hkv = k_cache.shape[1]
        rep = Hq // Hkv
        q = (lambda x, *d: x.permute(*d))((x @ wq).reshape(B, Sq, Hq, Dh), 0, 2, 1, 3)
        k = (lambda x, n, axis: torch.repeat_interleave(x, n, dim=axis))(k_cache, rep, axis=1)
        v = (lambda x, n, axis: torch.repeat_interleave(x, n, dim=axis))(v_cache, rep, axis=1)
        scores = torch.einsum("bhqd,bhkd->bhqk", q, k) * (Dh ** -0.5)
        p = _softmax(scores, axis=-1)
        o = torch.einsum("bhqk,bhkd->bhqd", p, v)
        return (lambda x, *d: x.permute(*d))(o, 0, 2, 1, 3).reshape(B, Sq, Hq * Dh) @ wo

    a = _A_ref(A_x, A_k_cache, A_v_cache, A_wq, A_wo)
    b = _B_ref(B_x, B_k_cache, B_v_cache, B_wq, B_wo)
    return torch.concatenate([a, b], axis=-1)
```

```python
NAME = "concat_heads__gqa_block_cached__gqa_block_cached__near_ridge"
HDR = """; Kernarg layout (104 bytes, ptrs only, base s[0:1]):
"""
def kernel_text(label, body, vgpr=256, sgpr=102, accum=None):
    if accum is None:
        accum = min(256, (vgpr + 3)//4*4)
    return f""".text
.globl {label}
.p2align 8
.type {label},@function
{label}:
{body}
""", f""".amdhsa_kernel {label}
  .amdhsa_next_free_vgpr {vgpr}
  .amdhsa_next_free_sgpr {sgpr}
  .amdhsa_accum_offset {accum}
  .amdhsa_group_segment_fixed_size 0
  .amdhsa_kernarg_size 104
  .amdhsa_user_sgpr_count 2
  .amdhsa_user_sgpr_kernarg_segment_ptr 1
  .amdhsa_system_sgpr_workgroup_id_x 1
.end_amdhsa_kernel
"""
def single(body, grid, block, lds, vgpr=256, sgpr=102, accum=None):
    label = NAME + "_kernel"
    t, d = kernel_text(label, body, vgpr, sgpr, accum)
    return (HDR + f"; @launch grid=({grid},1,1) block=({block},1,1) lds={lds}\n" +
            '.amdgcn_target "amdgcn-amd-amdhsa--gfx950"\n' + t + '.section .rodata,"a"\n.p2align 6\n' + d)
def multi(kernels):
    s = HDR
    for k in kernels:
        s += f"; @launch kernel={k['label']} grid=({k['grid']},1,1) block=({k['block']},1,1) lds={k['lds']}\n"
    s += '.amdgcn_target "amdgcn-amd-amdhsa--gfx950"\n'
    ds = ""
    for k in kernels:
        t, d = kernel_text(k['label'], k['body'], k.get('vgpr',256), k.get('sgpr',102), k.get('accum'))
        s += t
        ds += ".p2align 6\n" + d
    s += '.section .rodata,"a"\n' + ds
    return s
```

```python
import sys
sys.path.insert(0, "gen")
from asmlib import *

V_TID = 0
V_WQ, V_X, V_K0, V_K1, V_V, V_WO = 1, 2, 3, 4, 5, 6
V_WQA, V_XA, V_KA, V_VA, V_WOA = 7, 8, 9, 10, 11
V_L16 = 12
V_L = 13
V_MX = 14
V_T0 = 15
V_KT = 16
V_AT = 24
V_XT = 28
V_O = 32
V_Q = 96
V_S = 128
V_NEG = 144
V_KF = 160
V_VF = 192
V_QACC = 128
V_AR = 192
V_BX = 224
V_OWN = 96
V_PAR = 128
V_OACC = 160
V_PK = 224

S_X, S_WQ, S_K, S_V, S_WO, S_P = 8, 12, 16, 20, 24, 28
S_PG, S_OUT = 32, 36
S_WV, S_G, S_W = 40, 41, 42
S_TAU = 43
S_QSLOT = 44
S_WQOFF = 45
S_XOFF = 46
S_T0, S_T1, S_T2 = 47, 48, 49
S_WQL, S_XL, S_KVL, S_WOL = 50, 51, 52, 53
S_RD = 54
S_THR, S_FLOOR = 55, 56
S_KVOFF = 57
S_KVSLOT = 58
S_WOOFF = 59
S_GROUP, S_MEMBER, S_B, S_BR, S_H0 = 60, 61, 62, 63, 90
S_STAMP = 92
S_PSOFF = 91

QSLOT = 49152
KVSLOT = 32768
EXB = 65536
SCALE = (128 ** -0.5) * 1.4426950408889634

import struct
def f2u(f):
    return struct.unpack("<I", struct.pack("<f", f))[0]


class Gen:
    def __init__(self, stamps=False, dumpq=False, dumpo=False, nt=True, tail="k2"):
        self.L = []
        self.stamps = stamps
        self.dumpq = dumpq
        self.dumpo = dumpo
        self.nt = " nt" if nt else ""
        self.tail = tail
        self.nstamp = 0

    def e(self, s):
        self.L.append("    " + s)

    def lab(self, s):
        self.L.append(s + ":")

    def c(self, s):
        self.L.append("    ; " + s)

    def text(self):
        return "\n".join(self.L)

    def stamp(self):
        if not self.stamps:
            return
        k = self.nstamp
        self.nstamp += 1
        e = self.e
        e(f"s_memrealtime s[{S_STAMP}:{S_STAMP+1}]")
        e("s_waitcnt lgkmcnt(0)")
        e(f"s_cmp_lg_u32 s{S_WV}, 0")
        e(f"s_cbranch_scc1 STAMP_SKIP{k}")
        e(f"v_mov_b32 v{V_KT}, s{S_STAMP}")
        e(f"v_mov_b32 v{V_KT+1}, s{S_STAMP+1}")
        e(f"v_mov_b32 v{V_KT+2}, 0")
        e("s_mov_b64 s[96:97], exec")
        e("s_mov_b64 exec, 1")
        e(f"global_store_dwordx2 v{V_KT+2}, v[{V_KT}:{V_KT+1}], s[94:95] offset:{8*k}")
        e("s_mov_b64 exec, s[96:97]")
        self.lab(f"STAMP_SKIP{k}")

    def issue_w(self):
        e = self.e
        e(f"s_add_u32 m0, s{S_QSLOT}, s{S_WQL}")
        e(f"s_add_u32 s{S_T0}, s{S_WQOFF}, {32768-1024}")
        e(f"buffer_load_dwordx4 v{V_WQ}, s[{S_WQ}:{S_WQ+3}], s{S_WQOFF} offen lds")
        e(f"s_add_u32 s{S_T1}, s{S_WQOFF}, {2*(32768-1024)}")
        e(f"buffer_load_dwordx4 v{V_WQ}, s[{S_WQ}:{S_WQ+3}], s{S_T0} offen offset:1024 lds")
        e(f"s_add_u32 s{S_T0}, s{S_WQOFF}, {3*(32768-1024)}")
        e(f"buffer_load_dwordx4 v{V_WQ}, s[{S_WQ}:{S_WQ+3}], s{S_T1} offen offset:2048 lds")
        e(f"buffer_load_dwordx4 v{V_WQ}, s[{S_WQ}:{S_WQ+3}], s{S_T0} offen offset:3072 lds")
        e(f"s_add_u32 m0, s{S_QSLOT}, s{S_XL}")
        e(f"s_add_u32 s{S_T1}, s{S_XOFF}, 65536")
        e(f"buffer_load_dwordx4 v{V_X}, s[{S_X}:{S_X+3}], s{S_XOFF} offen lds")
        e(f"s_add_u32 m0, m0, 8192")
        e(f"s_add_u32 s{S_WQOFF}, s{S_WQOFF}, {64*8192}")
        e(f"buffer_load_dwordx4 v{V_X}, s[{S_X}:{S_X+3}], s{S_T1} offen lds")
        e(f"s_add_u32 s{S_XOFF}, s{S_XOFF}, 128")
        e(f"s_add_u32 s{S_QSLOT}, s{S_QSLOT}, {QSLOT}")
        e(f"s_cmp_ge_u32 s{S_QSLOT}, {3*QSLOT}")
        e(f"s_cselect_b32 s{S_QSLOT}, 0, s{S_QSLOT}")

    def adv_kvslot(self):
        e = self.e
        e(f"s_add_u32 s{S_KVSLOT}, s{S_KVSLOT}, {KVSLOT}")
        e(f"s_cmp_ge_u32 s{S_KVSLOT}, {5*KVSLOT}")
        e(f"s_cselect_b32 s{S_KVSLOT}, 0, s{S_KVSLOT}")

    def issue_kv(self):
        e = self.e
        nt = self.nt
        e(f"s_add_u32 m0, s{S_KVSLOT}, s{S_KVL}")
        e("s_nop 0")
        e(f"buffer_load_dwordx4 v{V_K0}, s[{S_K}:{S_K+3}], s{S_KVOFF} offen{nt} lds")
        e(f"buffer_load_dwordx4 v{V_K1}, s[{S_K}:{S_K+3}], s{S_KVOFF} offen offset:1024{nt} lds")
        e(f"s_add_u32 m0, m0, 8192")
        e("s_nop 0")
        e(f"buffer_load_dwordx4 v{V_V}, s[{S_V}:{S_V+3}], s{S_KVOFF} offen{nt} lds")
        e(f"buffer_load_dwordx4 v{V_V}, s[{S_V}:{S_V+3}], s{S_KVOFF} offen offset:1024{nt} lds")
        e(f"s_add_u32 s{S_KVOFF}, s{S_KVOFF}, 8192")
        self.adv_kvslot()

    def issue_wo(self):
        e = self.e
        e(f"s_add_u32 m0, s{S_KVSLOT}, s{S_WOL}")
        e(f"s_add_u32 s{S_T0}, s{S_WOOFF}, {8192-1024}")
        e(f"buffer_load_dwordx4 v{V_WO}, s[{S_WO}:{S_WO+3}], s{S_WOOFF} offen lds")
        e(f"s_add_u32 s{S_T1}, s{S_WOOFF}, {2*(8192-1024)}")
        e(f"buffer_load_dwordx4 v{V_WO}, s[{S_WO}:{S_WO+3}], s{S_T0} offen offset:1024 lds")
        e(f"s_add_u32 s{S_T0}, s{S_WOOFF}, {3*(8192-1024)}")
        e(f"buffer_load_dwordx4 v{V_WO}, s[{S_WO}:{S_WO+3}], s{S_T1} offen offset:2048 lds")
        e(f"buffer_load_dwordx4 v{V_WO}, s[{S_WO}:{S_WO+3}], s{S_T0} offen offset:3072 lds")
        e(f"s_add_u32 s{S_WOOFF}, s{S_WOOFF}, 128")
        self.adv_kvslot()

    def stream(self, reads, mfmas, look):
        e = self.e
        issued = 0
        nread = len(reads)
        done = 0
        for k, (need, pre, text) in enumerate(mfmas):
            tgt = min(nread, need + 1 + look, pre + 1)
            tgt = max(tgt, need + 1)
            while issued < tgt:
                e(reads[issued])
                issued += 1
            assert issued - done <= 15 or True
            if done < need + 1:
                n = issued - (need + 1)
                assert n <= 15
                e(f"s_waitcnt lgkmcnt({n})")
                done = need + 1
            e(text)
        while issued < nread:
            e(reads[issued]); issued += 1

    def prologue(self):
        e = self.e
        e("s_cmp_ge_u32 s2, 256")
        e("s_cbranch_scc1 END")
        e("s_load_dwordx8 s[64:71], s[0:1], 0")
        e("s_load_dwordx2 s[72:73], s[0:1], 32")
        e("s_load_dwordx8 s[76:83], s[0:1], 40")
        e("s_load_dwordx2 s[74:75], s[0:1], 72")
        e("s_load_dwordx4 s[84:87], s[0:1], 80")
        e("s_load_dwordx2 s[88:89], s[0:1], 96")
        e(f"v_readfirstlane_b32 s{S_WV}, v0")
        e(f"v_and_b32 v{V_L16}, 63, v0")
        e(f"s_lshr_b32 s{S_WV}, s{S_WV}, 6")
        e(f"s_lshr_b32 s{S_G}, s{S_WV}, 2")
        e(f"s_and_b32 s{S_W}, s{S_WV}, 3")
        e("s_and_b32 s3, s2, 7")
        e("s_lshr_b32 s4, s2, 3")
        e(f"s_lshr_b32 s{S_BR}, s3, 2")
        e("s_and_b32 s3, s3, 3")
        e(f"s_and_b32 s{S_B}, s4, 7")
        e("s_lshr_b32 s4, s4, 3")
        e(f"s_lshl_b32 s{S_MEMBER}, s3, 2")
        e(f"s_or_b32 s{S_MEMBER}, s{S_MEMBER}, s4")
        e(f"s_lshl_b32 s{S_H0}, s{S_MEMBER}, 1")
        e(f"s_lshl_b32 s{S_GROUP}, s{S_BR}, 3")
        e(f"s_or_b32 s{S_GROUP}, s{S_GROUP}, s{S_B}")
        L = V_L16
        hi4, lo4, t, t2 = V_KT, V_KT+1, V_KT+2, V_KT+3
        hi3, lo3 = V_KT+4, V_KT+5
        e(f"v_lshrrev_b32 v{hi4}, 4, v{L}")
        e(f"v_and_b32 v{lo4}, 15, v{L}")
        e(f"v_lshrrev_b32 v{hi3}, 3, v{L}")
        e(f"v_and_b32 v{lo3}, 7, v{L}")
        e(f"v_lshlrev_b32 v{t}, 2, v{hi4}")
        e(f"v_xor_b32 v{t}, v{t}, v{lo4}")
        e(f"v_lshlrev_b32 v{t}, 4, v{t}")
        e(f"s_lshl_b32 s3, s{S_W}, 4")
        e(f"v_add_u32 v{t2}, s3, v{hi4}")
        e(f"v_lshl_add_u32 v{V_WQ}, v{t2}, 13, v{t}")
        e(f"s_and_b32 s4, s{S_WV}, 1")
        e(f"s_lshl_b32 s4, s4, 2")
        e(f"v_or_b32 v{t2}, s4, v{hi4}")
        e(f"v_xor_b32 v{t2}, v{t2}, v{lo3}")
        e(f"v_lshlrev_b32 v{t2}, 4, v{t2}")
        e(f"s_lshl_b32 s3, s{S_WV}, 3")
        e(f"v_add_u32 v{V_X}, s3, v{hi3}")
        e(f"v_lshl_add_u32 v{V_X}, v{V_X}, 10, v{t2}")
        e(f"s_lshl_b32 s{S_WQL}, s{S_G}, 14")
        e(f"s_lshl_b32 s3, s{S_W}, 12")
        e(f"s_add_u32 s{S_WQL}, s{S_WQL}, s3")
        e(f"s_lshl_b32 s{S_XL}, s{S_WV}, 10")
        e(f"s_add_u32 s{S_XL}, s{S_XL}, 32768")
        e(f"s_lshl_b32 s{S_KVL}, s{S_G}, 14")
        e(f"s_lshl_b32 s3, s{S_W}, 11")
        e(f"s_add_u32 s{S_KVL}, s{S_KVL}, s3")
        e(f"s_lshl_b32 s{S_WOL}, s{S_WV}, 12")
        e("s_waitcnt lgkmcnt(0)")
        e(f"s_cmp_eq_u32 s{S_BR}, 1")
        e("s_cselect_b64 s[64:65], s[76:77], s[64:65]")
        e("s_cselect_b64 s[66:67], s[78:79], s[66:67]")
        e("s_cselect_b64 s[68:69], s[80:81], s[68:69]")
        e("s_cselect_b64 s[70:71], s[82:83], s[70:71]")
        e("s_cselect_b64 s[72:73], s[74:75], s[72:73]")
        e(f"s_mul_i32 s3, s{S_B}, 114688")
        e(f"s_add_u32 s{S_X}, s64, s3")
        e(f"s_addc_u32 s{S_X+1}, s65, 0")
        e(f"s_mov_b32 s{S_X+2}, 114688")
        e(f"s_mov_b32 s{S_X+3}, 0x00020000")
        e(f"s_add_u32 s4, s{S_H0}, s{S_G}")
        e(f"s_lshl_b32 s3, s4, 8")
        e(f"s_add_u32 s{S_WQ}, s70, s3")
        e(f"s_addc_u32 s{S_WQ+1}, s71, 0")
        e(f"s_sub_u32 s{S_WQ+2}, 4194304, s3")
        e(f"s_mov_b32 s{S_WQ+3}, 0x00020000")
        e(f"s_mov_b32 s{S_QSLOT}, 0")
        e(f"s_mov_b32 s{S_WQOFF}, 0")
        e(f"s_mov_b32 s{S_XOFF}, 0")
        for _ in range(3):
            self.issue_w()
        e(f"s_lshl_b32 s3, s{S_B}, 5")
        e(f"s_add_u32 s3, s3, s4")
        e(f"s_lshl_b32 s3, s3, 17")
        e(f"s_add_u32 s{S_K}, s66, s3")
        e(f"s_addc_u32 s{S_K+1}, s67, 0")
        e(f"s_mov_b32 s{S_K+2}, 131072")
        e(f"s_mov_b32 s{S_K+3}, 0x00020000")
        e(f"s_add_u32 s{S_V}, s68, s3")
        e(f"s_addc_u32 s{S_V+1}, s69, 0")
        e(f"s_mov_b32 s{S_V+2}, 131072")
        e(f"s_mov_b32 s{S_V+3}, 0x00020000")
        e(f"s_lshl_b32 s3, s{S_H0}, 17")
        e(f"s_add_u32 s{S_WO}, s72, s3")
        e(f"s_addc_u32 s{S_WO+1}, s73, 0")
        e(f"s_mov_b32 s{S_WO+2}, 262144")
        e(f"s_mov_b32 s{S_WO+3}, 0x00020000")
        e(f"s_lshl_b32 s3, s{S_GROUP}, 4")
        e(f"s_or_b32 s3, s3, s{S_MEMBER}")
        e(f"s_lshl_b32 s3, s3, 17")
        e(f"s_add_u32 s{S_P}, s88, s3")
        e(f"s_addc_u32 s{S_P+1}, s89, 0")
        e(f"s_mov_b32 s{S_P+2}, 131072")
        e(f"s_mov_b32 s{S_P+3}, 0x00020000")
        if self.stamps:
            e("s_add_u32 s94, s88, 0x8000000")
            e("s_addc_u32 s95, s89, 0")
            e("s_lshl_b32 s3, s2, 7")
            e("s_add_u32 s94, s94, s3")
            e("s_addc_u32 s95, s95, 0")
        e(f"s_lshl_b32 s3, s{S_W}, 3")
        e(f"v_add_u32 v{t2}, s3, v{hi4}")
        e(f"v_lshl_add_u32 v{V_V}, v{t2}, 8, v{t}")
        e(f"s_and_b32 s4, s{S_W}, 1")
        e(f"s_lshl_b32 s4, s4, 3")
        e(f"v_or_b32 v{t}, s4, v{hi4}")
        e(f"v_xor_b32 v{t}, v{t}, v{lo4}")
        e(f"v_lshlrev_b32 v{t}, 4, v{t}")
        e(f"v_lshl_add_u32 v{V_K0}, v{t2}, 8, v{t}")
        e(f"v_xor_b32 v{V_K1}, 64, v{V_K0}")
        e(f"v_and_b32 v{t}, 1, v{hi4}")
        e(f"v_lshlrev_b32 v{t}, 2, v{t}")
        e(f"v_xor_b32 v{t}, v{t}, v{lo3}")
        e(f"v_lshlrev_b32 v{t}, 4, v{t}")
        e(f"s_lshl_b32 s3, s{S_WV}, 5")
        e(f"v_add_u32 v{t2}, s3, v{hi3}")
        e(f"v_lshl_add_u32 v{V_WO}, v{t2}, 10, v{t}")
        G1, gp, r, cc, q = V_KT+4, V_KT+5, V_KT+6, V_KT+7, V_AT
        a, bb = V_AT+1, V_AT+2
        e(f"v_and_b32 v{G1}, 1, v{hi4}")
        e(f"v_lshrrev_b32 v{gp}, 5, v{L}")
        e(f"v_bfe_u32 v{r}, v{L}, 2, 2")
        e(f"v_and_b32 v{cc}, 3, v{L}")
        e(f"v_and_b32 v{q}, 31, v{L}")
        e(f"s_lshl_b32 s3, s{S_G}, 14")
        e(f"v_lshl_add_u32 v{a}, v{gp}, 3, v{r}")
        e(f"v_lshlrev_b32 v{a}, 8, v{a}")
        e(f"v_lshl_add_u32 v{a}, v{r}, 6, v{a}")
        e(f"v_lshl_add_u32 v{a}, v{G1}, 5, v{a}")
        e(f"v_and_b32 v{bb}, 1, v{cc}")
        e(f"v_lshl_add_u32 v{a}, v{bb}, 4, v{a}")
        e(f"v_lshrrev_b32 v{bb}, 1, v{cc}")
        e(f"v_lshl_add_u32 v{a}, v{bb}, 3, v{a}")
        e(f"v_add_u32 v{V_WQA}, s3, v{a}")
        e(f"v_lshl_add_u32 v{a}, v{gp}, 2, v{r}")
        e(f"v_lshlrev_b32 v{V_VA}, 8, v{a}")
        e(f"v_lshl_add_u32 v{V_VA}, v{r}, 6, v{V_VA}")
        e(f"v_lshl_add_u32 v{V_VA}, v{G1}, 5, v{V_VA}")
        e(f"v_lshl_add_u32 v{V_VA}, v{cc}, 3, v{V_VA}")
        e(f"s_add_u32 s4, s3, 8192")
        e(f"v_add_u32 v{V_VA}, s4, v{V_VA}")
        e(f"v_lshlrev_b32 v{V_WOA}, 7, v{a}")
        e(f"v_lshrrev_b32 v{bb}, 1, v{r}")
        e(f"v_xor_b32 v{bb}, s{S_G}, v{bb}")
        e(f"v_lshl_add_u32 v{V_WOA}, v{bb}, 6, v{V_WOA}")
        e(f"v_lshl_add_u32 v{V_WOA}, v{G1}, 5, v{V_WOA}")
        e(f"v_and_b32 v{bb}, 1, v{cc}")
        e(f"v_lshl_add_u32 v{V_WOA}, v{bb}, 4, v{V_WOA}")
        e(f"v_lshrrev_b32 v{bb}, 1, v{cc}")
        e(f"v_lshl_add_u32 v{V_WOA}, v{bb}, 3, v{V_WOA}")
        e(f"v_add_u32 v{V_WOA}, s3, v{V_WOA}")
        e(f"v_and_b32 v{bb}, 15, v{q}")
        e(f"v_xor_b32 v{bb}, v{bb}, v{gp}")
        e(f"v_lshlrev_b32 v{bb}, 4, v{bb}")
        e(f"v_lshl_add_u32 v{V_KA}, v{q}, 8, v{bb}")
        e(f"v_add_u32 v{V_KA}, s3, v{V_KA}")
        e(f"v_bfe_u32 v{bb}, v{q}, 1, 3")
        e(f"v_xor_b32 v{bb}, v{bb}, v{gp}")
        e(f"v_lshlrev_b32 v{bb}, 4, v{bb}")
        e(f"v_lshl_add_u32 v{V_XA}, v{q}, 7, v{bb}")
        e(f"s_lshl_b32 s4, s{S_W}, 12")
        e(f"s_add_u32 s4, s4, 32768")
        e(f"v_add_u32 v{V_XA}, s4, v{V_XA}")
        e(f"v_lshlrev_b32 v{V_L16}, 4, v{L}")
        for i in range(64):
            e(f"v_mov_b32 v{V_QACC+i}, 0")
        e(f"s_mov_b32 s{S_TAU}, 0")
        e(f"s_mov_b32 s{S_RD}, 0")
        e(f"s_mov_b32 s{S_KVSLOT}, {3*KVSLOT}")
        e(f"s_mov_b32 s{S_KVOFF}, 0")
        e(f"s_mov_b32 s{S_WOOFF}, 0")

    def qproj(self):
        e = self.e
        e("s_waitcnt vmcnt(12)")
        e("s_branch QENTRY")
        self.lab("QLOOP")
        e("s_waitcnt vmcnt(6)")
        self.lab("QENTRY")
        e("s_barrier")
        e(f"s_cmp_eq_u32 s{S_TAU}, 0")
        e("s_cbranch_scc1 QBODY")
        e(f"s_cmp_ge_u32 s{S_TAU}, 6")
        e("s_cbranch_scc1 QKV")
        self.issue_w()
        self.lab("QBODY")
        for t in range(4):
            if t == 0:
                e(f"v_add_u32 v{V_AT}, s{S_RD}, v{V_WQA}")
            else:
                e(f"v_xor_b32 v{V_AT+t}, {t<<6}, v{V_AT}")
        for u in range(4):
            if u == 0:
                e(f"v_add_u32 v{V_XT}, s{S_RD}, v{V_XA}")
            else:
                e(f"v_xor_b32 v{V_XT+u}, {u<<5}, v{V_XT}")
        reads = []
        mf = []
        ridx = {}
        for u in range(4):
            reads.append(f"ds_read_b128 v[{V_BX+4*u}:{V_BX+4*u+3}], v{V_XT+u}")
            for t in range(4):
                f = 4*u + t
                a = V_AR + 4*(f % 8)
                reads.append(f"ds_read_b64_tr_b16 v[{a}:{a+1}], v{V_AT+t} offset:{4096*u}")
                reads.append(f"ds_read_b64_tr_b16 v[{a+2}:{a+3}], v{V_AT+t} offset:{4096*u+1024}")
                ridx[f] = len(reads) - 1
        first_read_of = {}
        for f in range(16):
            first_read_of[f] = ridx[f] - 1
        for f in range(16):
            u, t = divmod(f, 4)
            a = V_AR + 4*(f % 8)
            acc = V_QACC + 16*t
            pre = first_read_of[f+8] - 1 if f + 8 < 16 else len(reads) - 1
            mf.append((ridx[f], pre,
                       f"v_mfma_f32_32x32x16_bf16 v[{acc}:{acc+15}], v[{a}:{a+3}], v[{V_BX+4*u}:{V_BX+4*u+3}], v[{acc}:{acc+15}]"))
        self.stream(reads, mf, look=11)
        e(f"s_add_u32 s{S_RD}, s{S_RD}, {QSLOT}")
        e(f"s_cmp_ge_u32 s{S_RD}, {3*QSLOT}")
        e(f"s_cselect_b32 s{S_RD}, 0, s{S_RD}")
        e(f"s_add_u32 s{S_TAU}, s{S_TAU}, 1")
        e(f"s_cmp_lt_u32 s{S_TAU}, 7")
        e("s_cbranch_scc1 QLOOP")
        e(f"s_cmp_eq_u32 s{S_TAU}, 7")
        e("s_cbranch_scc0 QDONE")
        e("s_waitcnt vmcnt(8)")
        e("s_branch QENTRY")
        self.lab("QKV")
        self.issue_kv()
        e(f"s_cmp_eq_u32 s{S_TAU}, 6")
        e("s_cbranch_scc0 QBODY")
        self.issue_kv()
        e("s_branch QBODY")
        self.lab("QDONE")
        e(f"s_mov_b32 s{S_T0}, {hex(f2u(SCALE))}")
        for i in range(64):
            e(f"v_mov_b32 v{V_O+i}, 0")
        e(f"v_mov_b32 v{V_L}, 0")
        for t in range(4):
            for h in range(2):
                for k in range(4):
                    a = V_QACC + 16*t + 8*h + 2*k
                    e(f"v_mul_f32 v{a}, s{S_T0}, v{a}")
                    e(f"v_mul_f32 v{a+1}, s{S_T0}, v{a+1}")
                    e(f"v_cvt_pk_bf16_f32 v{V_Q + (2*t+h)*4 + k}, v{a}, v{a+1}")
        for i in range(16):
            e(f"v_mov_b32 v{V_NEG+i}, 0")
        e(f"s_mov_b32 s{S_THR}, 0xff800000")
        e(f"s_mov_b32 s{S_FLOOR}, 0xff800000")
        e(f"s_mov_b32 s{S_RD}, {3*KVSLOT}")
        e(f"s_mov_b32 s{S_TAU}, 0")
        if self.dumpq:
            e("s_lshl_b32 s3, s2, 3")
            e(f"s_add_u32 s3, s3, s{S_WV}")
            e("s_lshl_b32 s3, s3, 13")
            e("s_add_u32 s4, s88, 0x4000000")
            e("s_addc_u32 s5, s89, 0")
            e("s_add_u32 s4, s4, s3")
            e("s_addc_u32 s5, s5, 0")
            for f in range(8):
                e(f"v_add_u32 v{V_T0}, {f*1024}, v{V_L16}")
                e(f"global_store_dwordx4 v{V_T0}, v[{V_Q+4*f}:{V_Q+4*f+3}], s[4:5]")
            e("s_waitcnt vmcnt(0)")

    def attention(self):
        e = self.e
        e("s_waitcnt vmcnt(8)")
        e("s_branch AENTRY")
        self.lab("ALOOP")
        e("s_waitcnt vmcnt(12)")
        self.lab("AENTRY")
        e("s_barrier")
        e(f"s_cmp_ge_u32 s{S_TAU}, 12")
        e("s_cbranch_scc1 AWO")
        self.issue_kv()
        e(f"s_cmp_eq_u32 s{S_TAU}, 0")
        e("s_cbranch_scc0 ABODY")
        self.issue_kv()
        self.lab("ABODY")
        e(f"v_add_u32 v{V_KT}, s{S_RD}, v{V_KA}")
        for s in range(1, 8):
            e(f"v_xor_b32 v{V_KT+s}, {s<<5}, v{V_KT}")
        e(f"v_add_u32 v{V_AT}, s{S_RD}, v{V_VA}")
        for t in range(1, 4):
            e(f"v_xor_b32 v{V_AT+t}, {t<<6}, v{V_AT}")
        for s in range(8):
            e(f"ds_read_b128 v[{V_KF+4*s}:{V_KF+4*s+3}], v{V_KT+s}")
        vreads = []
        for u in range(2):
            for t in range(4):
                a = V_VF + 4*(4*u+t)
                vreads.append(f"ds_read_b64_tr_b16 v[{a}:{a+1}], v{V_AT+t} offset:{4096*u}")
                vreads.append(f"ds_read_b64_tr_b16 v[{a+2}:{a+3}], v{V_AT+t} offset:{4096*u+2048}")
        for i in range(6):
            e(vreads[i])
        nv = 6
        for s in range(8):
            wv = (7-s)+nv
            if s >= 5: wv = min(wv, 11)
            e(f"s_waitcnt lgkmcnt({wv})")
            c = V_NEG if s == 0 else V_S
            e(f"v_mfma_f32_32x32x16_bf16 v[{V_S}:{V_S+15}], v[{V_KF+4*s}:{V_KF+4*s+3}], v[{V_Q+4*s}:{V_Q+4*s+3}], v[{c}:{c+15}]")
            if nv < 16:
                e(vreads[nv]); nv += 1
        while nv < 16:
            e(vreads[nv]); nv += 1
        e("s_nop 9")
        S = V_S
        e(f"v_max3_f32 v{V_MX}, v{S}, v{S+1}, v{S+2}")
        e(f"v_max3_f32 v{V_T0}, v{S+3}, v{S+4}, v{S+5}")
        e(f"v_max3_f32 v{V_MX}, v{V_MX}, v{S+6}, v{S+7}")
        e(f"v_max3_f32 v{V_T0}, v{V_T0}, v{S+8}, v{S+9}")
        e(f"v_max3_f32 v{V_MX}, v{V_MX}, v{S+10}, v{S+11}")
        e(f"v_max3_f32 v{V_T0}, v{V_T0}, v{S+12}, v{S+13}")
        e(f"v_max3_f32 v{V_MX}, v{V_MX}, v{S+14}, v{S+15}")
        e(f"v_max_f32 v{V_MX}, v{V_MX}, v{V_T0}")
        e(f"v_mov_b32 v{V_T0}, v{V_MX}")
        e("s_nop 1")
        e(f"v_permlane32_swap_b32 v{V_MX}, v{V_T0}")
        e("s_nop 1")
        e(f"v_max_f32 v{V_MX}, v{V_MX}, v{V_T0}")
        e(f"v_cmp_lt_f32 vcc, s{S_THR}, v{V_MX}")
        e("s_cbranch_vccnz ASLOW")
        self.lab("AFAST")
        for i in range(8):
            e(f"v_exp_f32 v{S+i}, v{S+i}")
        for i in range(8, 16):
            e(f"v_exp_f32 v{S+i}, v{S+i}")
            e(f"v_add_f32 v{V_L}, v{V_L}, v{S+i-8}")
        for k in range(4):
            e(f"v_cvt_pk_bf16_f32 v{S+k}, v{S+2*k}, v{S+2*k+1}")
        for i in range(8, 16):
            e(f"v_add_f32 v{V_L}, v{V_L}, v{S+i}")
        for k in range(4):
            e(f"v_cvt_pk_bf16_f32 v{S+4+k}, v{S+8+2*k}, v{S+8+2*k+1}")
        e("s_waitcnt lgkmcnt(0)")
        e("s_nop 0")
        for u in range(2):
            for t in range(4):
                a = V_VF + 4*(4*u+t)
                o = V_O + 16*t
                e(f"v_mfma_f32_32x32x16_bf16 v[{o}:{o+15}], v[{a}:{a+3}], v[{S+4*u}:{S+4*u+3}], v[{o}:{o+15}]")
        e(f"s_add_u32 s{S_RD}, s{S_RD}, {KVSLOT}")
        e(f"s_cmp_ge_u32 s{S_RD}, {5*KVSLOT}")
        e(f"s_cselect_b32 s{S_RD}, 0, s{S_RD}")
        e(f"s_mov_b32 s{S_THR}, {hex(f2u(8.0))}")
        e(f"s_mov_b32 s{S_FLOOR}, 0")
        e(f"s_add_u32 s{S_TAU}, s{S_TAU}, 1")
        e(f"s_cmp_lt_u32 s{S_TAU}, 16")
        e("s_cbranch_scc1 ALOOP")
        e("s_branch ADONE")
        self.lab("AWO")
        e(f"s_cmp_eq_u32 s{S_TAU}, 15")
        e("s_cbranch_scc1 ABODY")
        self.issue_wo()
        e("s_branch ABODY")
        self.lab("ASLOW")
        D, AL = V_T0, V_KT
        e(f"v_max_f32 v{D}, s{S_FLOOR}, v{V_MX}")
        e(f"v_max_f32 v{AL}, 0, v{D}")
        e(f"v_exp_f32 v{AL}, -v{AL}")
        for i in range(16):
            e(f"v_sub_f32 v{S+i}, v{S+i}, v{D}")
        for i in range(16):
            e(f"v_sub_f32 v{V_NEG+i}, v{V_NEG+i}, v{D}")
        e(f"v_mul_f32 v{V_L}, v{V_L}, v{AL}")
        for i in range(64):
            e(f"v_mul_f32 v{V_O+i}, v{V_O+i}, v{AL}")
        e("s_branch AFAST")
        self.lab("ADONE")

    def exchange(self):
        e = self.e
        e(f"v_mov_b32 v{V_T0}, v{V_L}")
        e("s_nop 1")
        e(f"v_permlane32_swap_b32 v{V_L}, v{V_T0}")
        e("s_nop 1")
        e(f"v_add_f32 v{V_L}, v{V_L}, v{V_T0}")
        e(f"v_rcp_f32 v{V_L}, v{V_L}")
        e("s_nop 7")
        for t in range(4):
            for h in range(2):
                for k in range(4):
                    a = V_O + 16*t + 8*h + 2*k
                    e(f"v_mul_f32 v{a}, v{a}, v{V_L}")
                    e(f"v_mul_f32 v{a+1}, v{a+1}, v{V_L}")
                    e(f"v_cvt_pk_bf16_f32 v{V_OWN + (2*t+h)*4 + k}, v{a}, v{a+1}")
        if self.dumpo:
            e("s_lshl_b32 s3, s2, 3")
            e(f"s_add_u32 s3, s3, s{S_WV}")
            e("s_lshl_b32 s3, s3, 13")
            e("s_add_u32 s4, s88, 0x5000000")
            e("s_addc_u32 s5, s89, 0")
            e("s_add_u32 s4, s4, s3")
            e("s_addc_u32 s5, s5, 0")
            for f in range(8):
                e(f"v_add_u32 v{V_T0}, {f*1024}, v{V_L16}")
                e(f"global_store_dwordx4 v{V_T0}, v[{V_OWN+4*f}:{V_OWN+4*f+3}], s[4:5]")
            e("s_waitcnt vmcnt(0)")
        e(f"s_lshl_b32 s3, s{S_WV}, 13")
        e(f"s_add_u32 s3, s3, {EXB}")
        e(f"v_add_u32 v{V_T0}, s3, v{V_L16}")
        e(f"v_xor_b32 v{V_MX}, {4*8192}, v{V_T0}")
        e("s_barrier")
        for f in range(8):
            e(f"ds_write_b128 v{V_T0}, v[{V_OWN+4*f}:{V_OWN+4*f+3}] offset:{f*1024}")
        e("s_waitcnt lgkmcnt(0)")
        e("s_barrier")
        for f in range(8):
            e(f"ds_read_b128 v[{V_PAR+4*f}:{V_PAR+4*f+3}], v{V_MX} offset:{f*1024}")
        e("s_waitcnt lgkmcnt(0)")
        e("s_barrier")
        e(f"s_mov_b32 s{S_KVSLOT}, {2*KVSLOT}")
        self.issue_wo()
        self.issue_wo()
        e(f"s_mov_b32 s{S_RD}, {4*KVSLOT}")
        e(f"s_mov_b32 s{S_TAU}, 0")

    def outproj(self):
        e = self.e
        e(f"s_lshl_b32 s{S_PSOFF}, s{S_WV}, 11")
        e(f"s_mov_b64 s[4:5], -1")
        e(f"s_cmp_eq_u32 s{S_W}, 3")
        e(f"s_cselect_b32 s4, 0xffff, s4")
        e(f"s_cselect_b32 s5, 0xffff, s5")
        self.lab("OLOOP")
        e(f"s_cmp_eq_u32 s{S_TAU}, 0")
        e("s_cbranch_scc1 OW0")
        e("s_waitcnt vmcnt(8)")
        e("s_branch OW1")
        self.lab("OW0")
        e("s_waitcnt vmcnt(16)")
        self.lab("OW1")
        e("s_barrier")
        e(f"s_cmp_eq_u32 s{S_TAU}, 0")
        e("s_cbranch_scc1 OBODY")
        e(f"s_cmp_ge_u32 s{S_TAU}, 4")
        e("s_cbranch_scc1 OBODY")
        self.issue_wo()
        self.lab("OBODY")
        e(f"v_add_u32 v{V_AT}, s{S_RD}, v{V_WOA}")
        e(f"v_xor_b32 v{V_AT+1}, 16384, v{V_AT}")
        reads = []
        mf = []
        ridx = {}
        for f in range(16):
            hsel, u = divmod(f, 8)
            a = V_AR + 4*(f % 8)
            reads.append(f"ds_read_b64_tr_b16 v[{a}:{a+1}], v{V_AT+hsel} offset:{2048*u}")
            reads.append(f"ds_read_b64_tr_b16 v[{a+2}:{a+3}], v{V_AT+hsel} offset:{2048*u+1024}")
            ridx[f] = len(reads) - 1
        acc = V_OACC
        for f in range(16):
            hsel, u = divmod(f, 8)
            a = V_AR + 4*(f % 8)
            bsrc = (V_OWN if hsel == 0 else V_PAR) + 4*u
            pre = (ridx[f+8] - 2) if f + 8 < 16 else len(reads) - 1
            c = "0" if f == 0 else f"v[{acc}:{acc+15}]"
            mf.append((ridx[f], pre,
                       f"v_mfma_f32_32x32x16_bf16 v[{acc}:{acc+15}], v[{a}:{a+3}], v[{bsrc}:{bsrc+3}], {c}"))
        self.stream(reads, mf, look=11)
        e("s_nop 11")
        for k in range(8):
            e(f"v_cvt_pk_bf16_f32 v{V_PK+k}, v{acc+2*k}, v{acc+2*k+1}")
        e("s_mov_b64 exec, s[4:5]")
        e(f"buffer_store_dwordx4 v[{V_PK}:{V_PK+3}], v{V_L16}, s[{S_P}:{S_P+3}], s{S_PSOFF} offen")
        e(f"buffer_store_dwordx4 v[{V_PK+4}:{V_PK+7}], v{V_L16}, s[{S_P}:{S_P+3}], s{S_PSOFF} offen offset:1024")
        e("s_mov_b64 exec, -1")
        e(f"s_add_u32 s{S_PSOFF}, s{S_PSOFF}, 16384")
        e(f"s_add_u32 s{S_RD}, s{S_RD}, {KVSLOT}")
        e(f"s_cmp_ge_u32 s{S_RD}, {5*KVSLOT}")
        e(f"s_cselect_b32 s{S_RD}, 0, s{S_RD}")
        e(f"s_add_u32 s{S_TAU}, s{S_TAU}, 1")
        e(f"s_cmp_lt_u32 s{S_TAU}, 8")
        e("s_cbranch_scc1 OLOOP")

    def main_kernel(self):
        self.prologue()
        self.stamp()
        self.qproj()
        self.stamp()
        self.attention()
        self.stamp()
        self.exchange()
        self.stamp()
        self.outproj()
        self.e("s_waitcnt vmcnt(0)")
        self.stamp()
        self.e("s_waitcnt vmcnt(0)")
        self.lab("END")
        self.e("s_endpgm")
        return self.text()


def reduce_kernel():
    g = Gen()
    e = g.e
    e("s_cmp_ge_u32 s2, 256")
    e("s_cbranch_scc1 REND")
    e("s_load_dwordx2 s[4:5], s[0:1], 80")
    e("s_load_dwordx2 s[6:7], s[0:1], 96")
    e("v_readfirstlane_b32 s40, v0")
    e("v_and_b32 v1, 63, v0")
    e("s_lshr_b32 s40, s40, 6")
    e("s_and_b32 s3, s2, 7")
    e("s_lshr_b32 s8, s2, 3")
    e("s_lshr_b32 s63, s3, 2")
    e("s_and_b32 s3, s3, 3")
    e("s_and_b32 s62, s8, 7")
    e("s_lshr_b32 s8, s8, 3")
    e("s_lshl_b32 s61, s3, 2")
    e("s_or_b32 s61, s61, s8")
    e("s_lshl_b32 s60, s63, 3")
    e("s_or_b32 s60, s60, s62")
    reduce_body(g, "s40", "s60", "s61", "s62", "s63", 4, 6)
    g.lab("REND")
    e("s_endpgm")
    return g.text()


def reduce_body(g, sj, sgroup, smember, sb, sbr, sout, sws, ldflags=""):
    e = g.e
    m, gp, k, t = 2, 3, 4, 5
    e(f"v_and_b32 v{m}, 31, v1")
    e(f"v_lshrrev_b32 v{gp}, 5, v1")
    e(f"v_and_b32 v{k}, 3, v{m}")
    e(f"v_bfe_u32 v{t}, v{m}, 3, 1")
    e(f"v_lshl_or_b32 v{k}, v{t}, 2, v{k}")
    e(f"v_bfe_u32 v{t}, v{m}, 2, 1")
    e(f"v_lshl_or_b32 v{k}, v{t}, 3, v{k}")
    e(f"v_and_b32 v{t}, 16, v{m}")
    e(f"v_or_b32 v{k}, v{k}, v{t}")
    e(f"v_lshlrev_b32 v{t}, 3, v{gp}")
    e(f"v_sub_u32 v{k}, v{k}, v{t}")
    e("s_mov_b32 s9, 0x3f80")
    e("s_mov_b32 s10, 0x3f800000")
    for i in range(4):
        e(f"v_mov_b32 v{8+i}, 0")
        e(f"v_mov_b32 v6, s9")
        e(f"v_cmp_eq_u32 vcc, {2*i}, v{k}")
        e("s_nop 1")
        e(f"v_cndmask_b32 v{8+i}, v{8+i}, v6, vcc")
        e(f"v_mov_b32 v6, s10")
        e(f"v_cmp_eq_u32 vcc, {2*i+1}, v{k}")
        e("s_nop 1")
        e(f"v_cndmask_b32 v{8+i}, v{8+i}, v6, vcc")
    e("s_waitcnt lgkmcnt(0)")
    e(f"s_lshl_b32 s3, {sgroup}, 21")
    e(f"s_add_u32 s32, s{sws}, s3")
    e(f"s_addc_u32 s33, s{sws+1}, 0")
    e("s_mov_b32 s34, 0x200000")
    e("s_mov_b32 s35, 0x00020000")
    e(f"s_lshl_b32 s3, {sj}, 14")
    e(f"s_lshl_b32 s11, {smember}, 10")
    e("s_add_u32 s3, s3, s11")
    e("v_lshlrev_b32 v7, 4, v1")
    e("v_add_u32 v7, s3, v7")
    e(f"s_bfe_u32 s12, {smember}, 0x20001")
    e("s_lshl_b32 s13, s12, 5")
    e(f"v_add_u32 v12, s13, v{m}")
    e("v_cmp_gt_u32 vcc, 112, v12")
    e("s_and_saveexec_b64 s[14:15], vcc")
    for p in range(16):
        e(f"s_mov_b32 s3, {p*131072}")
        e(f"buffer_load_dwordx4 v[{32+4*p}:{35+4*p}], v7, s[32:35], s3 offen{ldflags}")
    e("s_mov_b64 exec, s[14:15]")
    e(f"s_mul_i32 s3, {sb}, 112")
    e("v_add_u32 v12, s3, v12")
    e("v_lshlrev_b32 v12, 11, v12")
    e(f"s_lshl_b32 s3, {sbr}, 10")
    e(f"s_lshl_b32 s11, {sj}, 7")
    e("s_add_u32 s3, s3, s11")
    e(f"s_lshr_b32 s11, {smember}, 3")
    e("s_lshl_b32 s11, s11, 6")
    e("s_add_u32 s3, s3, s11")
    e(f"s_and_b32 s11, {smember}, 1")
    e("s_lshl_b32 s11, s11, 5")
    e("s_add_u32 s3, s3, s11")
    e(f"v_lshlrev_b32 v13, 4, v{gp}")
    e("v_add_u32 v12, v12, v13")
    e("v_add_u32 v12, s3, v12")
    e(f"s_mov_b32 s36, s{sout}")
    e(f"s_mov_b32 s37, s{sout+1}")
    e("s_mov_b32 s38, 1835008")
    e("s_mov_b32 s39, 0x00020000")
    for p in range(16):
        e(f"s_waitcnt vmcnt({15-p})")
        c = "0" if p == 0 else "v[16:31]"
        e(f"v_mfma_f32_32x32x16_bf16 v[16:31], v[8:11], v[{32+4*p}:{35+4*p}], {c}")
    e("s_nop 11")
    for k2 in range(4):
        e(f"v_cvt_pk_bf16_f32 v{8+k2}, v{16+2*k2}, v{17+2*k2}")
    e("s_and_b64 exec, exec, vcc")
    e("buffer_store_dwordx4 v[8:11], v12, s[36:39], 0 offen")
    e("s_waitcnt vmcnt(0)")


def build(**kw):
    g = Gen(**kw)
    body = g.main_kernel()
    red = reduce_kernel()
    return multi([
        dict(label="main_kernel", body=body, grid=256, block=512, lds=163840, vgpr=256, sgpr=102, accum=256),
        dict(label="reduce_kernel", body=red, grid=256, block=512, lds=0, vgpr=96, sgpr=102, accum=96),
    ])


if __name__ == "__main__":
    import argparse
    ap = argparse.ArgumentParser()
    ap.add_argument("-o", default="d10.s")
    ap.add_argument("--stamps", action="store_true")
    ap.add_argument("--dumpq", action="store_true")
    ap.add_argument("--dumpo", action="store_true")
    ap.add_argument("--nont", action="store_true")
    a = ap.parse_args()
    open(a.o, "w").write(build(stamps=a.stamps, dumpq=a.dumpq, dumpo=a.dumpo, nt=not a.nont))
```
